```python
import torch

def _softmax(x, axis=-1):
    return torch.softmax(x, dim=axis)
def _gelu(x):
    return torch.nn.functional.gelu(x, approximate="tanh")
def _silu(x):
    return torch.nn.functional.silu(x)
def _sigmoid(x):
    return torch.sigmoid(x)
def _layernorm(x, axis=-1, eps=1e-5):
    m = x.mean(dim=axis, keepdim=True)
    v = x.var(dim=axis, keepdim=True, unbiased=False)
    return (x - m) / torch.sqrt(v + eps)
def _scatter_add(tgt, idx, src, axis=0):
    return tgt.clone().index_add_(axis, idx, src)
def _segment_sum(src, seg, n):
    out = torch.zeros((n,) + src.shape[1:], dtype=src.dtype)
    return out.index_add_(0, seg, src)
def _pad(x, pw):
    flat = tuple(v for pair in reversed(pw) for v in pair)
    return torch.nn.functional.pad(x, flat)

kernel_name = 'sequential_preLN__sliding_block__mixer_token_mlp__prompt'

def setup_inputs():

    _w = (lambda a: (lambda t: t.to(torch.bfloat16) if t.is_floating_point() else t)(torch.as_tensor(a)))
    def _A_setup():
        B, S, D = 1, 2048, 576
        return {
            "x": _w((lambda *s: torch.randn(*s, dtype=torch.bfloat16) * 0.05)(B, S, D)),
            "wqkv": _w((lambda *s: torch.randn(*s, dtype=torch.bfloat16) * 0.05)(D, 3 * D)),
            "wo": _w((lambda *s: torch.randn(*s, dtype=torch.bfloat16) * 0.05)(D, D)),
        }
    _A_in = _A_setup()

    def _B_setup():
        B, S, D, F = 1, 2048, 576, 4608
        return {
            "x": _w((lambda *s: torch.randn(*s, dtype=torch.bfloat16) * 0.05)(B, S, D)),
            "w1": _w((lambda *s: torch.randn(*s, dtype=torch.bfloat16) * 0.8)(S, F) * (S ** -0.5)),
            "b1": _w((lambda *s: torch.randn(*s, dtype=torch.bfloat16) * 0.8)(F) * 0.02),
            "w2": _w((lambda *s: torch.randn(*s, dtype=torch.bfloat16) * 0.8)(F, S) * (F ** -0.5)),
            "b2": _w((lambda *s: torch.randn(*s, dtype=torch.bfloat16) * 0.8)(S) * 0.02),
        }
    _B_in = _B_setup()

    return {
        "A_x": _A_in["x"],
        "A_wqkv": _A_in["wqkv"],
        "A_wo": _A_in["wo"],
        "B_x": _B_in["x"],
        "B_w1": _B_in["w1"],
        "B_b1": _B_in["b1"],
        "B_w2": _B_in["w2"],
        "B_b2": _B_in["b2"],
    }

def reference(A_x, A_wqkv, A_wo, B_x, B_w1, B_b1, B_w2, B_b2):
    def _A_ref(x, wqkv, wo):
        B, S, D = x.shape
        H = 32; Dh = D // H; W = 256
        qkv = (lambda x, *d: x.permute(*d))((x @ wqkv).reshape(B, S, 3, H, Dh), 2, 0, 3, 1, 4)
        q, k, v = qkv[0], qkv[1], qkv[2]
        scores = torch.einsum("bhqd,bhkd->bhqk", q, k) * (Dh ** -0.5)
        idx = torch.arange(S)
        mask = (idx[:, None] - idx[None, :] >= 0) & (idx[:, None] - idx[None, :] < W)
        scores = torch.where(mask[None, None], scores, -1e9)
        p = _softmax(scores, axis=-1)
        o = torch.einsum("bhqk,bhkd->bhqd", p, v)
        return (lambda x, *d: x.permute(*d))(o, 0, 2, 1, 3).reshape(B, S, D) @ wo

    def _B_ref(x, w1, b1, w2, b2):
        B, S, D = x.shape
        h = _layernorm(x, axis=-1)
        u = torch.einsum("bsd,sf->bdf", h, w1) + b1
        u = _gelu(u)
        y = torch.einsum("bdf,fs->bds", u, w2) + b2
        return (lambda x, *d: x.permute(*d))(y, 0, 2, 1)

    x = A_x
    h = x + _A_ref(_layernorm(x, axis=-1), A_wqkv, A_wo)
    h2 = h + _B_ref(_layernorm(h, axis=-1), B_w1, B_b1, B_w2, B_b2)
    return h2
```

```python
from dsl import *

WS_QM = 0
WS_KM = WS_QM + 32 * 64 * 1024
WS_QT = WS_KM + 32 * 64 * 1024
WS_KT = WS_QT + 32 * 64 * 128
VBLK = 1216
WS_VF = WS_KT + 32 * 64 * 128
WS_O = WS_VF + 32 * 64 * VBLK
WS_H = WS_O + 128 * 18 * 1024
WS_HN = WS_H + 2048 * 1152
WS_U = WS_HN + 2048 * 1152
WS_END = WS_U + 6 * 72 * 12288
WS_SIZE = 268435456

KA_X, KA_WQKV, KA_WO, KA_BX, KA_W1, KA_B1, KA_W2, KA_B2, KA_OUT, KA_DBG, KA_WS = [8 * i for i in range(11)]


def srd(a, dst, ptr, nbytes):
    a("s_mov_b32 s%d, s%d" % (dst, ptr))
    a("s_and_b32 s%d, s%d, 0xffff" % (dst + 1, ptr + 1))
    a("s_mov_b32 s%d, 0x%x" % (dst + 2, nbytes))
    a("s_mov_b32 s%d, 0x20000" % (dst + 3))


def kernel_header(name):
    return (".text\n.globl %s\n.p2align 8\n.type %s,@function\n%s:\n" % (name, name, name))


def kernel_desc(name, vgpr, sgpr=96):
    acc = (vgpr + 3) // 4 * 4
    return ('.section .rodata,"a"\n.p2align 6\n.amdhsa_kernel %s\n'
            "  .amdhsa_next_free_vgpr %d\n  .amdhsa_next_free_sgpr %d\n  .amdhsa_accum_offset %d\n"
            "  .amdhsa_group_segment_fixed_size 0\n  .amdhsa_kernarg_size 88\n"
            "  .amdhsa_user_sgpr_count 2\n  .amdhsa_user_sgpr_kernarg_segment_ptr 1\n"
            "  .amdhsa_system_sgpr_workgroup_id_x 1\n"
            "  .amdhsa_float_denorm_mode_32 3\n"
            ".end_amdhsa_kernel\n" % (name, vgpr, sgpr, acc))


import os
DBG = os.environ.get("GDBG", "")

def loader_loop(a, NS, R, n, issue, s_cnt):
    if "nodma" in DBG:
        issue = lambda: a("s_nop 0")
    if "free" in DBG:
        D = int(os.environ.get("GDEPTH", "28"))
        a("s_mov_b32 s%d, %d" % (s_cnt, NS))
        a.label("ld_loop")
        issue()
        a("s_waitcnt vmcnt(%d)" % D)
        a("s_sub_u32 s%d, s%d, 1" % (s_cnt, s_cnt))
        a("s_cmp_lg_u32 s%d, 0" % s_cnt)
        a("s_cbranch_scc1 %s" % a.L("ld_loop"))
        return
    for _ in range(min(R, NS)):
        issue()
    a("s_waitcnt vmcnt(%d)" % ((min(R, NS) - 1) * n))
    a("s_barrier")
    if NS > R:
        a("s_mov_b32 s%d, %d" % (s_cnt, NS - R))
        a.label("ld_loop")
        a("s_waitcnt vmcnt(%d)" % ((R - 2) * n))
        a("s_barrier")
        issue()
        a("s_sub_u32 s%d, s%d, 1" % (s_cnt, s_cnt))
        a("s_cmp_lg_u32 s%d, 0" % s_cnt)
        a("s_cbranch_scc1 %s" % a.L("ld_loop"))
    for i in range(max(NS - R, 0), NS - 1):
        a("s_waitcnt vmcnt(%d)" % ((NS - 2 - i) * n))
        a("s_barrier")


def slot_advance(a, s_slot, stage_bytes, R):
    a("s_add_u32 s%d, s%d, %d" % (s_slot, s_slot, stage_bytes))
    a("s_cmp_eq_u32 s%d, %d" % (s_slot, stage_bytes * R))
    a("s_cselect_b32 s%d, 0, s%d" % (s_slot, s_slot))


def loader_unrolled(a, NS, R, n, issue):
    if "nodma" in DBG:
        issue = lambda st: a("s_nop 0")
    for st in range(min(R, NS)):
        issue(st)
    a("s_waitcnt vmcnt(%d)" % ((min(R, NS) - 1) * n))
    a("s_barrier")
    for i in range(NS - 1):
        last_issued = min(NS - 1, i + R - 1)
        a("s_waitcnt vmcnt(%d)" % ((last_issued - (i + 1)) * n))
        a("s_barrier")
        if i + R < NS:
            issue(i + R)


def compute_loop(a, NS, R, stage_bytes, nsteps, reads, mfmas, set_addr, s_slot, s_cnt, extra=None, post=None, unroll_all=False):
    if "free" in DBG:
        return
    if "noread" in DBG:
        reads = lambda st, se: []
    if "nomfma" in DBG:
        mfmas = lambda se: ["s_nop 0"]

    def block(rd, mf, ex):
        fill = list(rd) + list(ex)
        per = max(1, -(-len(fill) // max(1, len(mf) - 1)))
        for t in interleave(mf, fill, 0, 1, per):
            a(t)

    ex = extra if extra else (lambda st, se: [])
    po = post if post else (lambda st, se: None)
    a("s_mov_b32 s%d, 0" % s_slot)
    set_addr()
    a("s_barrier")
    for t in reads(0, 0):
        a(t)
    par = [0]

    def stage(last):
        for st in range(nsteps):
            cur = par[0]
            a("s_waitcnt lgkmcnt(0)")
            if st < nsteps - 1:
                block(reads(st + 1, cur ^ 1), mfmas(cur), ex(st, cur))
            elif not last:
                a("s_barrier")
                slot_advance(a, s_slot, stage_bytes, R)
                set_addr()
                block(reads(0, cur ^ 1), mfmas(cur), ex(st, cur))
            else:
                block([], mfmas(cur), ex(st, cur))
            po(st, cur)
            par[0] ^= 1

    U = 1 if nsteps % 2 == 0 else 2
    nloop = (NS - 1) // U
    a("s_mov_b32 s%d, %d" % (s_cnt, nloop))
    a.label("cp_loop")
    for _ in range(U):
        stage(False)
    a("s_sub_u32 s%d, s%d, 1" % (s_cnt, s_cnt))
    a("s_cmp_lg_u32 s%d, 0" % s_cnt)
    a("s_cbranch_scc1 %s" % a.L("cp_loop"))
    for _ in range(NS - 1 - nloop * U):
        stage(False)
    stage(True)
```

```python
import re

TRANS = ("v_exp_f32", "v_log_f32", "v_rcp_f32", "v_rsq_f32", "v_sqrt_f32", "v_sin_f32", "v_cos_f32")
_REG = re.compile(r"^(-|abs\()?([vsa])(\d+)\)?$")
_RNG = re.compile(r"^(-|abs\()?([vsa])\[(\d+):(\d+)\]\)?$")


def regs_of(op):
    op = op.strip()
    if op in ("vcc",):
        return {("s", 106), ("s", 107)}
    if op in ("exec",):
        return {("s", 126), ("s", 127)}
    if op == "m0":
        return {("s", 124)}
    m = _REG.match(op)
    if m:
        return {(m.group(2), int(m.group(3)))}
    m = _RNG.match(op)
    if m:
        return {(m.group(2), i) for i in range(int(m.group(3)), int(m.group(4)) + 1)}
    return set()


class Inst:
    def __init__(self, text):
        self.text = text
        t = text.split(";")[0].strip()
        parts = t.split(None, 1)
        self.mn = parts[0]
        rest = parts[1] if len(parts) > 1 else ""
        ops, depth, cur = [], 0, ""
        for ch in rest:
            if ch in "[(":
                depth += 1
            if ch in "])":
                depth -= 1
            if ch == "," and depth == 0:
                ops.append(cur.strip()); cur = ""
            else:
                cur += ch
        if cur.strip():
            ops.append(cur.strip())
        self.mods = ""
        if ops:
            last = ops[-1].split(None, 1)
            ops[-1] = last[0]
            if len(last) > 1:
                self.mods = last[1]
        self.ops = ops
        self.classify()

    def classify(self):
        mn, ops = self.mn, self.ops
        R = [regs_of(o) for o in ops]
        self.w = set(); self.r = set()
        self.kind = "other"; self.passes = 0; self.srcc = set(); self.ab = set()
        self.states = 1
        self.store_data = set()
        self.is_dpp = ("row_" in self.mods) or ("quad_perm" in self.mods) or ("wave_" in self.mods)
        U = lambda l: set().union(*l) if l else set()
        if mn == "s_nop":
            self.kind = "nop"; self.states = int(ops[0], 0) + 1
        elif mn.startswith("v_mfma"):
            self.kind = "mfma"
            self.passes = 8 if "32x32x16" in mn else 4
            self.w = R[0]; self.ab = R[1] | R[2]; self.srcc = R[3]; self.r = self.ab | self.srcc
        elif mn.startswith("v_"):
            self.kind = "valu"
            if mn.startswith("v_permlane") and "swap" in mn:
                self.w = R[0] | R[1]; self.r = R[0] | R[1]
            else:
                self.w = R[0]; self.r = U(R[1:])
                if mn.startswith(("v_fmac", "v_dot2c", "v_pk_fmac")):
                    self.r |= R[0]
                if mn.startswith(("v_add_co", "v_sub_co", "v_addc_co")):
                    self.w |= R[1]; self.r = U(R[2:])
        elif mn.startswith("ds_"):
            self.kind = "ds"
            if mn.startswith(("ds_read", "ds_bpermute", "ds_permute", "ds_swizzle")):
                self.w = R[0]; self.r = U(R[1:])
            else:
                self.r = U(R)
        elif mn.startswith(("buffer_", "global_")):
            self.kind = "vmem"
            lds = re.search(r"\blds\b", self.mods) is not None
            self.lds = lds
            if mn in ("buffer_wbl2", "buffer_inv"):
                pass
            elif "load" in mn and not lds:
                self.w = R[0]; self.r = U(R[1:])
            elif "load" in mn and lds:
                self.r = U(R) | {("s", 124)}
            elif mn.startswith("global_store") or mn.startswith("global_atomic"):
                self.r = U(R)
                if "x4" in mn or "x3" in mn:
                    self.store_data = R[1]
            else:
                self.r = U(R)
                if "x4" in mn or "x3" in mn:
                    self.store_data = R[0]
                if "atomic" in mn and "sc0" in self.mods:
                    self.w = R[0]
        elif mn.startswith("s_"):
            self.kind = "salu"
            if mn.startswith(("s_cmp", "s_cbranch", "s_branch", "s_waitcnt", "s_barrier", "s_setprio",
                              "s_endpgm", "s_sleep", "s_bitcmp")):
                self.r = U(R)
                if mn.startswith(("s_cbranch", "s_branch")):
                    self.kind = "branch"
            elif mn.startswith(("s_load", "s_memtime", "s_memrealtime", "s_buffer_load", "s_atomic")):
                self.kind = "smem"; self.w = R[0]; self.r = U(R[1:])
            else:
                self.w = R[0]; self.r = U(R[1:])
                if "saveexec" in mn:
                    self.w |= regs_of("exec"); self.r |= regs_of("exec")
        self.trans = mn.startswith(TRANS)
        self.dot = mn.startswith("v_dot")


def need(p, c):
    n = 0
    pv = {x for x in p.w if x[0] in "va"}
    ps = {x for x in p.w if x[0] == "s"}
    if p.kind == "valu":
        if c.kind == "mfma" and pv & c.r:
            n = max(n, 2)
        if p.trans and c.kind == "valu" and not c.trans and pv & c.r:
            n = max(n, 1)
        if c.kind == "valu" and pv & c.r:
            if c.mn.startswith(("v_readfirstlane", "v_readlane")):
                n = max(n, 1)
            if c.mn.startswith("v_permlane") or c.is_dpp:
                n = max(n, 2)
        if ps:
            if c.kind in ("valu", "mfma") and ps & c.r:
                n = max(n, 4 if c.mn.startswith(("v_readlane", "v_writelane")) else 2)
            if c.kind == "vmem" and ps & c.r:
                n = max(n, 5)
            if c.kind in ("salu", "branch", "smem") and ps & c.r:
                n = max(n, 1)
        if p.dot:
            if c.kind in ("valu", "mfma", "vmem", "ds") and (pv & (c.r | c.w)):
                same_acc = (c.mn == p.mn and pv <= c.w and not (pv & set().union(*[regs_of(o) for o in c.ops[1:3]])))
                if not same_acc:
                    n = max(n, 3)
    if p.kind == "mfma":
        big = 12 if p.passes == 8 else 8
        if c.kind == "mfma":
            if p.w & c.ab:
                n = max(n, big)
            if p.w & c.srcc and not (p.w == c.srcc and p.passes == c.passes):
                n = max(n, 10 if p.passes == 8 else 6)
            if p.w & c.w and not (p.w & c.srcc):
                n = max(n, big)
        elif c.kind in ("valu", "vmem", "ds"):
            if p.w & (c.r | c.w):
                n = max(n, big)
            if c.kind == "valu" and p.srcc & c.w:
                n = max(n, 7 if p.passes == 8 else 3)
    if p.kind == "salu" and ("s", 124) in p.w and c.kind == "vmem" and getattr(c, "lds", False):
        n = max(n, 1)
    if p.store_data and (p.store_data & c.w):
        n = max(n, 2 if c.kind in ("valu", "mfma") else 1)
    return n


class Asm:
    def __init__(self, prefix):
        self.items = []
        self.prefix = prefix
        self.nlab = 0

    def __call__(self, text):
        for line in text.split("\n"):
            line = line.strip()
            if not line or line.startswith(";"):
                if line:
                    self.items.append(("raw", "    " + line))
                continue
            if line.endswith(":"):
                self.items.append(("label", line[:-1]))
            elif line.startswith("."):
                self.items.append(("raw", line))
            else:
                self.items.append(Inst(line))

    def label(self, name):
        self.items.append(("label", self.prefix + name))

    def L(self, name):
        return self.prefix + name

    def fix_hazards(self, window=22):
        out = []
        for it in self.items:
            if isinstance(it, Inst):
                k = self._short(out, it, window)
                while k > 0:
                    m = min(k, 16)
                    out.append(Inst("s_nop %d" % (m - 1)))
                    k -= m
            out.append(it)
        self.items = out
        changed = True
        while changed:
            changed = False
            labels = {it[1]: i for i, it in enumerate(self.items) if isinstance(it, tuple) and it[0] == "label"}
            for i, it in enumerate(self.items):
                if isinstance(it, Inst) and it.kind == "branch" and it.ops[0] in labels:
                    hist = self.items[: i + 1]
                    j = labels[it.ops[0]] + 1
                    tail = list(hist[-3 * window:])
                    cnt = 0
                    while j < len(self.items) and cnt < window:
                        c = self.items[j]
                        if isinstance(c, Inst):
                            k = self._short(tail, c, window)
                            if k > 0:
                                self.items.insert(j, Inst("s_nop %d" % (min(k, 16) - 1)))
                                changed = True
                                break
                            tail.append(c)
                            cnt += c.states
                            if c.mn in ("s_branch", "s_endpgm"):
                                break
                        j += 1
                    if changed:
                        break

    @staticmethod
    def _short(hist, c, window):
        dist = 0
        short = 0
        for p in reversed(hist):
            if not isinstance(p, Inst):
                continue
            if p.mn in ("s_branch", "s_endpgm") and p is not hist[-1]:
                break
            if p.mn in ("s_endpgm",):
                break
            n = need(p, c)
            if n > dist:
                short = max(short, n - dist)
            dist += p.states
            if dist >= window:
                break
        return short

    def text(self):
        o = []
        for it in self.items:
            if isinstance(it, Inst):
                o.append("    " + it.text)
            elif it[0] == "label":
                o.append(it[1] + ":")
            else:
                o.append(it[1])
        return "\n".join(o) + "\n"


def v(i, n=1):
    return "v%d" % i if n == 1 else "v[%d:%d]" % (i, i + n - 1)


def s(i, n=1):
    return "s%d" % i if n == 1 else "s[%d:%d]" % (i, i + n - 1)


def interleave(main, fill, start=0, every=1, per=1):
    out = []
    fi = 0
    for i, m in enumerate(main):
        out.append(m)
        if i >= start and (i - start) % every == 0:
            for _ in range(per):
                if fi < len(fill):
                    out.append(fill[fi]); fi += 1
    out.extend(fill[fi:])
    return out
```

```python
from common import *
from k45 import f2u, lane_decomp

QSCALE = 18 ** -0.5 * 1.4426950408889634
EPS = 1e-5
ONES = 0x3F803F80


def gen_k1(name="k1_kernel", R=4):
    a = Asm("k1_")
    NS, SB = 9, 32768
    CS = SB * R
    ST = CS + 512
    LDS = ST + 1024
    S_X, S_W, S_WS = 8, 12, 16
    sW, sMb, sHp, sTmp = 20, 21, 22, 23
    sOffX, sOffW, sSlot, sCnt = 24, 25, 26, 27
    a("s_cmp_ge_u32 s2, 256")
    a("s_cbranch_scc1 %s" % a.L("end"))
    a("s_load_dwordx4 s[32:35], s[0:1], %d" % KA_X)
    a("s_load_dwordx2 s[36:37], s[0:1], %d" % KA_WS)
    a("v_lshrrev_b32 v1, 6, v0")
    a("v_mov_b32 v30, v0")
    a("v_and_b32 v0, 63, v0")
    a("v_readfirstlane_b32 s%d, v1" % sW)
    a("s_bfe_u32 s%d, s2, 0x20001" % sMb)
    a("s_lshl_b32 s%d, s%d, 2" % (sMb, sMb))
    a("s_lshr_b32 s%d, s2, 6" % sTmp)
    a("s_add_u32 s%d, s%d, s%d" % (sMb, sMb, sTmp))
    a("s_and_b32 s%d, s2, 1" % sHp)
    a("s_lshl_b32 s%d, s%d, 3" % (sHp, sHp))
    a("s_bfe_u32 s%d, s2, 0x30003" % sTmp)
    a("s_add_u32 s%d, s%d, s%d" % (sHp, sHp, sTmp))
    a("s_waitcnt lgkmcnt(0)")
    srd(a, S_X, 32, 2048 * 1152)
    srd(a, S_W, 34, 576 * 3456)
    srd(a, S_WS, 36, WS_END)
    a("s_cmp_ge_u32 s%d, 4" % sW)
    a("s_cbranch_scc1 %s" % a.L("loader"))

    CA, CUR = 8, 16
    CSA, SQ = 24, 28
    TQ, TK, TV, TT = 64, 80, 96, 112
    SET = (128, 148)
    assert R == 4
    a("v_and_b32 v2, 63, v30")
    a("v_lshrrev_b32 v3, 6, v30")
    a("v_and_b32 v4, 3, v2")
    a("v_lshlrev_b32 v4, 2, v4")
    a("v_add_u32 v4, 15, v4")
    a("v_and_b32 v4, 15, v4")
    a("v_lshlrev_b32 v4, 4, v4")
    a("v_lshl_add_u32 v4, v2, 8, v4")
    a("v_lshl_add_u32 v4, v3, 15, v4")
    for i in range(4):
        a("v_mov_b32 v%d, 0x%x" % (32 + i, ONES))
    a("ds_write_b128 v4, v[32:35] offset:16384")
    a("v_mov_b32 v5, 0")
    a("v_and_b32 v6, 127, v30")
    a("v_lshlrev_b32 v6, 2, v6")
    a("v_add_u32 v6, %d, v6" % CS)
    a("ds_write_b32 v6, v5")
    vT, vHf = 2, 3
    a("v_and_b32 v%d, 31, v0" % vT)
    a("v_lshrrev_b32 v%d, 5, v0" % vHf)
    a("v_bfe_u32 v4, v%d, 1, 3" % vT)
    a("v_xor_b32 v4, v4, v%d" % vHf)
    a("s_lshl_b32 s%d, s%d, 12" % (sTmp, sW))
    a("v_lshlrev_b32 v5, 7, v%d" % vT)
    a("v_add_u32 v5, s%d, v5" % sTmp)
    for ks in range(4):
        a("v_xor_b32 v6, %d, v4" % (2 * ks))
        a("v_lshl_add_u32 v%d, v6, 4, v5" % (CA + ks))
    a("v_bfe_u32 v4, v0, 2, 2")
    a("v_and_b32 v5, 3, v0")
    a("v_bfe_u32 v6, v0, 4, 1")
    a("v_lshl_add_u32 v5, v6, 2, v5")
    a("v_lshl_add_u32 v6, v%d, 3, v4" % vHf)
    a("v_lshlrev_b32 v6, 8, v6")
    a("v_add_u32 v6, 16384, v6")
    a("v_and_b32 v7, 1, v5")
    a("v_lshl_add_u32 v7, v7, 3, v6")
    a("v_lshrrev_b32 v31, 1, v5")
    a("v_lshl_add_u32 v29, v4, 2, v31")
    for T, cb in enumerate((0, 5, 10)):
        a("v_add_u32 v32, %d, v29" % cb)
        a("v_and_b32 v32, 15, v32")
        a("v_lshl_add_u32 v%d, v32, 4, v7" % (CA + 4 + T))
    a("v_mul_u32_u24 v32, 5, v31")
    a("v_add_u32 v32, 4, v32")
    a("v_min_u32 v32, 15, v32")
    a("v_lshl_add_u32 v32, v4, 2, v32")
    a("v_and_b32 v32, 15, v32")
    a("v_lshl_add_u32 v%d, v32, 4, v6" % (CA + 7))
    for i in range(64):
        a("v_mov_b32 v%d, 0" % (TQ + i))
    for i in range(5):
        a("v_mov_b32 v%d, 0" % (CSA + i))
    a("s_mov_b32 s40, 0x%x" % ONES)
    a("s_waitcnt lgkmcnt(0)")

    def set_addr():
        for t in range(8):
            a("v_add_u32 v%d, s%d, v%d" % (CUR + t, sSlot, CA + t))

    def reads(step, se):
        base = SET[se]
        o = ["ds_read_b128 %s, v%d" % (v(base, 4), CUR + step)]
        for T in range(4):
            for h2 in range(2):
                o.append("ds_read_b64_tr_b16 %s, v%d offset:%d" % (v(base + 4 + 4 * T + 2 * h2, 2), CUR + 4 + T, (16 * step + 4 * h2) * 256))
        return o

    def mfmas(se):
        base = SET[se]
        x = v(base, 4)
        w = lambda T: v(base + 4 + 4 * T, 4)
        M = "v_mfma_f32_32x32x16_bf16 %s, %s, %s, %s"
        return [M % (v(TQ, 16), w(0), x, v(TQ, 16)), M % (v(TK, 16), w(1), x, v(TK, 16)),
                M % (v(TV, 16), x, w(2), v(TV, 16)), M % (v(TT, 16), w(3), x, v(TT, 16))]

    def extra(step, se):
        base = SET[se]
        return ["v_dot2c_f32_bf16 v%d, v%d, v%d" % (SQ, base + i, base + i) for i in range(4)]

    cnt = [0]

    def post(step, se):
        base = SET[se]
        cnt[0] += 1
        lab = a.L("cs%d" % cnt[0])
        a("s_cmp_lg_u32 s%d, %d" % (sW, step))
        a("s_cbranch_scc1 %s" % lab)
        for i in range(4):
            for T in range(4):
                a("v_dot2c_f32_bf16 v%d, s40, v%d" % (CSA + T, base + 4 + 4 * T + i))
        a(lab + ":")

    compute_loop(a, NS, R, SB, 4, reads, mfmas, set_addr, sSlot, sCnt, extra=extra, post=post)
    a("v_lshlrev_b32 v4, 2, v%d" % vT)
    a("v_add_u32 v5, %d, v4" % CS)
    for T in range(4):
        a("ds_add_f32 v5, v%d offset:%d" % (CSA + T, 128 * T))
    a("v_mov_b32 v29, v%d" % SQ)
    a("v_permlane32_swap_b32 v%d, v29" % SQ)
    a("v_add_f32 v%d, v%d, v29" % (SQ, SQ))
    vM, vR, vRq = 32, 33, 34
    a("v_mul_f32 v%d, 0x%x, v%d" % (vM, f2u(1.0 / 576), TT + 12))
    a("v_mul_f32 v%d, 0x%x, v%d" % (vR, f2u(1.0 / 576), SQ))
    a("v_fma_f32 v%d, -v%d, v%d, v%d" % (vR, vM, vM, vR))
    a("v_max_f32 v%d, 0, v%d" % (vR, vR))
    a("v_add_f32 v%d, 0x%x, v%d" % (vR, f2u(EPS), vR))
    a("v_rsq_f32 v%d, v%d" % (vR, vR))
    a("s_lshl_b32 s%d, s%d, 8" % (sTmp, sW))
    a("s_add_u32 s%d, s%d, %d" % (sTmp, sTmp, ST))
    a("v_add_u32 v6, s%d, v4" % sTmp)
    a("v_mul_f32 v%d, 0x%x, v%d" % (vRq, f2u(QSCALE), vR))
    a("ds_write_b32 v6, v%d" % vR)
    a("ds_write_b32 v6, v%d offset:128" % vM)
    a("s_waitcnt lgkmcnt(0)")
    a("s_barrier")
    C = 128
    a("v_lshlrev_b32 v7, 4, v%d" % vHf)
    a("v_add_u32 v31, %d, v7" % CS)
    for n, T in enumerate((0, 1, 3)):
        for q in range(4 if T != 3 else 3):
            a("ds_read_b128 %s, v31 offset:%d" % (v(C + 16 * n + 4 * q, 4), 128 * T + 32 * q))
    a("ds_read_b32 v35, v5 offset:256")
    a("v_add_u32 v31, s%d, v7" % sTmp)
    for q in range(4):
        a("ds_read_b128 %s, v31 offset:%d" % (v(172 + 4 * q, 4), 32 * q))
    for q in range(4):
        a("ds_read_b128 %s, v31 offset:%d" % (v(188 + 4 * q, 4), 128 + 32 * q))
    sB, sQ, sK, sQt, sKt, sV = 41, 42, 43, 44, 45, 46
    a("s_lshl_b32 s%d, s%d, 7" % (sB, sHp))
    a("s_lshl_b32 s%d, s%d, 2" % (sTmp, sMb))
    a("s_add_u32 s%d, s%d, s%d" % (sB, sB, sTmp))
    a("s_add_u32 s%d, s%d, s%d" % (sB, sB, sW))
    a("s_lshl_b32 s%d, s%d, 10" % (sQ, sB))
    a("s_add_u32 s%d, s%d, %d" % (sK, sQ, WS_KM))
    a("s_add_u32 s47, s%d, 65536" % sQ)
    a("s_add_u32 s48, s%d, 65536" % sK)
    a("s_lshl_b32 s%d, s%d, 7" % (sQt, sB))
    a("s_add_u32 s%d, s%d, %d" % (sKt, sQt, WS_KT))
    a("s_add_u32 s%d, s%d, %d" % (sQt, sQt, WS_QT))
    a("s_add_u32 s49, s%d, 8192" % sQt)
    a("s_add_u32 s50, s%d, 8192" % sKt)
    a("s_mul_i32 s%d, s%d, %d" % (sV, sB, VBLK))
    a("s_add_u32 s%d, s%d, %d" % (sV, sV, WS_VF))
    a("v_lshlrev_b32 v36, 4, v0")
    a("v_cmp_eq_u32 s[52:53], 0, v%d" % vHf)
    a("s_waitcnt lgkmcnt(0)")
    for i in range(12):
        sc = vRq if i < 4 else vR
        a("v_fma_f32 v%d, -v%d, v%d, v%d" % (TT + i, vM, C + 32 + i, TT + i))
        a("v_mul_f32 v%d, v%d, v%d" % (TT + i, sc, TT + i))
    for t in range(6):
        a("v_cvt_pk_bf16_f32 v%d, v%d, v%d" % (TT + t, TT + 2 * t, TT + 2 * t + 1))
    for n, (T, sc, s0, s1, st0, st1) in enumerate(((TQ, vRq, sQ, 47, sQt, 49), (TK, vR, sK, 48, sKt, 50))):
        for i in range(16):
            a("v_fma_f32 v%d, -v%d, v%d, v%d" % (T + i, vM, C + 16 * n + i, T + i))
            a("v_mul_f32 v%d, v%d, v%d" % (T + i, sc, T + i))
        for t in range(8):
            a("v_cvt_pk_bf16_f32 v%d, v%d, v%d" % (T + t, T + 2 * t, T + 2 * t + 1))
        a("buffer_store_dwordx4 %s, v36, s[%d:%d], s%d offen" % (v(T, 4), S_WS, S_WS + 3, s0))
        a("v_cndmask_b32 v%d, v%d, v%d, s[52:53]" % (T + 8, T + 4, T + 6))
        a("v_cndmask_b32 v%d, v%d, v%d, s[52:53]" % (T + 9, T + 5, T + 7))
        a("v_cndmask_b32 v%d, v%d, v%d, s[52:53]" % (T + 10, T + 6, TT + 2 * n))
        a("v_cndmask_b32 v%d, v%d, v%d, s[52:53]" % (T + 11, T + 7, TT + 2 * n + 1))
        a("buffer_store_dwordx4 %s, v36, s[%d:%d], s%d offen" % (v(T + 8, 4), S_WS, S_WS + 3, s1))
    for i in range(16):
        a("v_fma_f32 v%d, -v%d, v35, v%d" % (TV + i, 188 + i, TV + i))
        a("v_mul_f32 v%d, v%d, v%d" % (TV + i, 172 + i, TV + i))
    for t in range(8):
        a("v_cvt_pk_bf16_f32 v%d, v%d, v%d" % (TV + t, TV + 2 * t, TV + 2 * t + 1))
    a("v_lshlrev_b32 v37, 4, v%d" % vT)
    a("v_cmp_lt_u32 vcc, 17, v%d" % vT)
    a("v_add_u32 v38, %d, v37" % (64 * VBLK - 18 * 16))
    a("v_cndmask_b32 v37, v37, v38, vcc")
    a("v_mad_u32_u24 v37, v%d, s51, v37" % vHf) if False else None
    a("v_mul_u32_u24 v38, 304, v%d" % vHf)
    a("v_add_u32 v37, v37, v38")
    a("buffer_store_dwordx4 %s, v37, s[%d:%d], s%d offen" % (v(TV, 4), S_WS, S_WS + 3, sV))
    a("buffer_store_dwordx4 %s, v37, s[%d:%d], s%d offen offset:608" % (v(TV + 4, 4), S_WS, S_WS + 3, sV))
    a("v_lshrrev_b32 v38, 4, v%d" % vT)
    a("v_mul_u32_u24 v38, 608, v38")
    a("v_bfe_u32 v39, v%d, 2, 1" % vT)
    a("v_mul_u32_u24 v39, 304, v39")
    a("v_add_u32 v38, v38, v39")
    a("v_and_b32 v39, 3, v%d" % vT)
    a("v_lshl_add_u32 v38, v39, 1, v38")
    a("v_bfe_u32 v39, v%d, 3, 1" % vT)
    a("v_lshl_add_u32 v38, v39, 3, v38")
    a("v_add_u32 v38, %d, v38" % (64 * VBLK))
    a("v_bfe_u32 v39, v0, 2, 1")
    a("v_mul_u32_u24 v39, %d, v39" % (64 * VBLK))
    a("v_and_b32 v40, 3, v0")
    a("v_mul_u32_u24 v40, 304, v40")
    a("v_add_u32 v39, v39, v40")
    for i in range(4):
        a("v_mov_b32 v%d, s40" % (44 + i))
    a("s_mov_b32 exec_hi, 0")
    for n, (T, st0, st1) in enumerate(((TQ, sQt, 49), (TK, sKt, 50))):
        a("buffer_store_dword v%d, v4, s[%d:%d], s%d offen" % (T + 4, S_WS, S_WS + 3, st0))
        a("buffer_store_dword v%d, v4, s[%d:%d], s%d offen" % (T + 5, S_WS, S_WS + 3, st1))
    a("buffer_store_short v%d, v38, s[%d:%d], s%d offen offset:%d" % (TT + 4, S_WS, S_WS + 3, sV, 14 * 16))
    a("buffer_store_short_d16_hi v%d, v38, s[%d:%d], s%d offen offset:%d" % (TT + 4, S_WS, S_WS + 3, sV, 15 * 16))
    a("buffer_store_short v%d, v38, s[%d:%d], s%d offen offset:%d" % (TT + 5, S_WS, S_WS + 3, sV, 16 * 16))
    a("buffer_store_short_d16_hi v%d, v38, s[%d:%d], s%d offen offset:%d" % (TT + 5, S_WS, S_WS + 3, sV, 17 * 16))
    a("s_mov_b64 exec, 0xff")
    a("buffer_store_dwordx4 v[44:47], v39, s[%d:%d], s%d offen offset:288" % (S_WS, S_WS + 3, sV))
    a("s_endpgm")

    a.label("loader")
    a("s_sub_u32 s%d, s%d, 4" % (sW, sW))
    VX, VW = 8, 12
    a("v_lshrrev_b32 v2, 3, v0")
    a("v_and_b32 v3, 7, v0")
    a("v_lshrrev_b32 v4, 4, v0")
    a("v_mul_u32_u24 v5, 1152, v2")
    for i in range(4):
        a("v_add_u32 v6, %d, v4" % (4 * (i & 1)))
        a("v_xor_b32 v6, v3, v6")
        a("v_lshl_add_u32 v6, v6, 4, v5")
        a("v_add_u32 v%d, %d, v6" % (VX + i, 8 * i * 1152 - 1024 * i))
    a("v_and_b32 v3, 15, v0")
    a("v_lshlrev_b32 v5, 2, v4")
    a("v_sub_u32 v3, v3, v5")
    a("v_and_b32 v3, 15, v3")
    a("v_cmp_ne_u32 s[42:43], 15, v3")
    a("v_mul_u32_u24 v5, 52, v3")
    a("v_lshrrev_b32 v5, 8, v5")
    a("v_min_u32 v5, 2, v5")
    a("v_mul_u32_u24 v6, %d, v5" % (1152 - 80))
    a("v_lshl_add_u32 v6, v3, 4, v6")
    a("v_mul_u32_u24 v5, 3456, v4")
    a("v_add_u32 v6, v6, v5")
    for i in range(4):
        a("v_add_u32 v%d, %d, v6" % (VW + i, 4 * i * 3456 - 1024 * i))
    a("s_lshl_b32 s%d, s%d, 2" % (sOffX, sMb))
    a("s_add_u32 s%d, s%d, s%d" % (sOffX, sOffX, sW))
    a("s_mul_i32 s%d, s%d, %d" % (sOffX, sOffX, 32 * 1152))
    a("s_mul_i32 s%d, s%d, %d" % (sOffW, sW, 16 * 3456))
    a("s_mul_i32 s%d, s%d, 72" % (sTmp, sHp))
    a("s_add_u32 s%d, s%d, s%d" % (sOffW, sOffW, sTmp))
    a("s_lshl_b32 s29, s%d, 12" % sW)
    a("s_add_u32 s30, s29, 16384")
    a("s_mov_b32 s%d, 0" % sSlot)

    def issue():
        a("s_add_u32 m0, s%d, s29" % sSlot)
        for i in range(4):
            a("buffer_load_dwordx4 v%d, s[%d:%d], s%d offen offset:%d lds" % (VX + i, S_X, S_X + 3, sOffX, 1024 * i))
        a("s_add_u32 m0, s%d, s30" % sSlot)
        a("s_mov_b64 exec, s[42:43]")
        for i in range(4):
            a("buffer_load_dwordx4 v%d, s[%d:%d], s%d offen offset:%d lds" % (VW + i, S_W, S_W + 3, sOffW, 1024 * i))
        a("s_mov_b64 exec, -1")
        a("s_add_u32 s%d, s%d, 128" % (sOffX, sOffX))
        a("s_add_u32 s%d, s%d, %d" % (sOffW, sOffW, 64 * 3456))
        slot_advance(a, sSlot, SB, R)

    loader_loop(a, NS, R, 8, issue, sCnt)
    a.label("end")
    a("s_endpgm")
    a.fix_hazards()
    return kernel_header(name) + a.text(), kernel_desc(name, 208), "grid=(256,1,1) block=(512,1,1) lds=%d" % LDS


def gen_k2(name="k2_kernel"):
    a = Asm("k2_")
    S_WS = 8
    sW, sH, sQb, sTmp = 12, 13, 14, 15
    a("s_cmp_ge_u32 s2, 256")
    a("s_cbranch_scc1 %s" % a.L("end"))
    a("s_load_dwordx2 s[4:5], s[0:1], %d" % KA_WS)
    a("v_lshrrev_b32 v1, 6, v0")
    a("v_and_b32 v0, 63, v0")
    a("v_readfirstlane_b32 s%d, v1" % sW)
    a("s_and_b32 s%d, s2, 7" % sH)
    a("s_lshl_b32 s%d, s%d, 2" % (sH, sH))
    a("s_bfe_u32 s%d, s2, 0x10003" % sTmp)
    a("s_lshl_b32 s%d, s%d, 1" % (sTmp, sTmp))
    a("s_add_u32 s%d, s%d, s%d" % (sH, sH, sTmp))
    a("s_lshr_b32 s%d, s%d, 2" % (sTmp, sW))
    a("s_add_u32 s%d, s%d, s%d" % (sH, sH, sTmp))
    a("s_lshr_b32 s%d, s2, 4" % sQb)
    a("s_lshl_b32 s%d, s%d, 2" % (sQb, sQb))
    a("s_and_b32 s%d, s%d, 3" % (sTmp, sW))
    a("s_add_u32 s%d, s%d, s%d" % (sQb, sQb, sTmp))
    KM, KT, QM, QTA, QTB, VE, VL, S0 = 16, 52, 64, 68, 72, 76, 16, 112
    S = lambda b: S0 + 16 * b
    vL16, vKT, vV, vQT, vT, vHf = 1, 2, 3, 4, 5, 6
    a("v_lshlrev_b32 v%d, 4, v0" % vL16)
    a("v_and_b32 v%d, 31, v0" % vT)
    a("v_lshrrev_b32 v%d, 5, v0" % vHf)
    a("v_lshlrev_b32 v%d, 2, v%d" % (vKT, vT))
    a("v_lshl_or_b32 v%d, v%d, 30, v%d" % (vQT, vHf, vKT))
    a("v_cmp_eq_u32 vcc, 22, v%d" % vT)
    a("v_mov_b32 v7, 18")
    a("v_cndmask_b32 v7, v%d, v7, vcc" % vT)
    a("v_cmp_lt_u32 vcc, 18, v7")
    a("v_mul_u32_u24 v%d, 304, v%d" % (vV, vHf))
    a("v_lshl_add_u32 v%d, v7, 4, v%d" % (vV, vV))
    a("v_mov_b32 v7, 0x40000000")
    a("v_cndmask_b32 v%d, v%d, v7, vcc" % (vV, vV))
    for i in range(12):
        a("v_mov_b32 v%d, 0" % (KT + i))
    for i in range(QTA, QTA + 8):
        a("v_mov_b32 v%d, 0" % i)
    a("s_lshl_b32 s%d, s%d, 6" % (sTmp, sH))
    for b in range(9):
        a("s_add_i32 s%d, s%d, %d" % (16 + b, sQb, b - 8))
        a("s_max_i32 s%d, s%d, 0" % (16 + b, 16 + b))
        a("s_add_u32 s%d, s%d, s%d" % (16 + b, 16 + b, sTmp))
    a("s_waitcnt lgkmcnt(0)")
    srd(a, S_WS, 4, WS_END)
    R_ = "s[%d:%d]" % (S_WS, S_WS + 3)
    a("s_lshl_b32 s26, s24, 10")
    a("buffer_load_dwordx4 %s, v%d, %s, s26 offen" % (v(QM, 4), vL16, R_))
    a("s_lshl_b32 s26, s24, 7")
    a("s_add_u32 s26, s26, %d" % WS_QT)
    a("buffer_load_dword v%d, v%d, %s, s26 offen" % (QTA, vQT, R_))
    for b in range(9):
        a("s_lshl_b32 s26, s%d, 10" % (16 + b))
        a("s_add_u32 s26, s26, %d" % WS_KM)
        a("buffer_load_dwordx4 %s, v%d, %s, s26 offen" % (v(KM + 4 * b, 4), vL16, R_))
        a("s_lshl_b32 s27, s%d, 7" % (16 + b))
        a("s_add_u32 s27, s27, %d" % WS_KT)
        a("buffer_load_dword v%d, v%d, %s, s27 offen" % (KT + b, vKT, R_))
    order = [1, 2, 3, 4, 5, 6, 7, 0, 8]
    vreg = {}
    for n, b in enumerate(order):
        vreg[b] = VE + 8 * n if n < 4 else VL + 8 * (n - 4)

    def loadv(b):
        a("s_mul_i32 s26, s%d, %d" % (16 + b, VBLK))
        a("s_add_u32 s26, s26, %d" % WS_VF)
        a("buffer_load_dwordx4 %s, v%d, %s, s26 offen" % (v(vreg[b], 4), vV, R_))
        a("buffer_load_dwordx4 %s, v%d, %s, s26 offen offset:608" % (v(vreg[b] + 4, 4), vV, R_))
    for b in order[:4]:
        loadv(b)
    a("v_lshlrev_b32 v7, 2, v%d" % vHf)
    a("v_sub_u32 v7, v%d, v7" % vT)
    SM = 32
    for i in range(16):
        a("v_cmp_le_i32 s[%d:%d], %d, v7" % (SM + 2 * i, SM + 2 * i + 1, 8 * (i >> 2) + (i & 3)))
    a("v_mov_b32 v108, 0xffff")
    a("v_mov_b32 v109, 0xffff0000")
    for t in range(8):
        a("v_cndmask_b32 v%d, 0, v108, s[%d:%d]" % (8 + t, SM + 4 * t, SM + 4 * t + 1))
        a("v_cndmask_b32 v110, 0, v109, s[%d:%d]" % (SM + 4 * t + 2, SM + 4 * t + 3))
        a("v_or_b32 v%d, v%d, v110" % (8 + t, 8 + t))
    M = "v_mfma_f32_32x32x16_bf16 %s, %s, %s, %s"
    for b in range(9):
        a("s_waitcnt vmcnt(%d)" % (24 - 2 * b))
        if b == 0:
            a("v_mov_b32 v%d, v%d" % (QTB + 1, QTA))
        a(M % (v(S(b), 16), v(KM + 4 * b, 4), v(QM, 4), "0"))
        a(M % (v(S(b), 16), v(KT + (b & ~1), 4), v(QTB if b & 1 else QTA, 4), v(S(b), 16)))
    for b in order[4:]:
        loadv(b)
    a("s_cmp_ge_u32 s%d, 8" % sQb)
    a("s_cbranch_scc1 %s" % a.L("allvalid"))
    a("s_nop 7")
    for b in range(8):
        a("s_cmp_ge_u32 s%d, %d" % (sQb, 8 - b))
        a("s_cbranch_scc1 %s" % a.L("allvalid"))
        for i in range(16):
            a("v_mov_b32 v%d, 0xff800000" % (S(b) + i))
    a.label("allvalid")
    vm = [108, 109, 110, 111]
    vals = [S(b) + i for b in range(1, 8) for i in range(16)]
    for c in range(4):
        a("v_max_f32 v%d, v%d, v%d" % (vm[c], vals[2 * c], vals[2 * c + 1]))
    k = 8
    c = 0
    while k < len(vals):
        a("v_max3_f32 v%d, v%d, v%d, v%d" % (vm[c], vm[c], vals[k], vals[k + 1]))
        k += 2; c = (c + 1) & 3
    for i in range(16):
        a("v_cndmask_b32 v%d, v%d, v%d, s[%d:%d]" % (S(0) + i, S(0) + i, S(8) + i, SM + 2 * i, SM + 2 * i + 1))
    for i in range(0, 16, 2):
        a("v_max3_f32 v%d, v%d, v%d, v%d" % (vm[c], vm[c], S(0) + i, S(0) + i + 1))
        c = (c + 1) & 3
    a("v_max3_f32 v108, v108, v109, v110")
    a("v_max_f32 v108, v108, v111")
    a("v_mov_b32 v109, v108")
    a("v_permlane32_swap_b32 v108, v109")
    a("v_max_f32 v108, v108, v109")
    O = S(8)
    first = True
    nv = 18
    for n, b in enumerate(order[:8]):
        sb = S(b)
        for i in range(16):
            a("v_sub_f32 v%d, v%d, v108" % (sb + i, sb + i))
        for i in range(16):
            a("v_exp_f32 v%d, v%d" % (sb + i, sb + i))
        for t in range(8):
            a("v_cvt_pk_bf16_f32 v%d, v%d, v%d" % (sb + t, sb + 2 * t, sb + 2 * t + 1))
        if b == 0:
            for t in range(8):
                a("v_and_b32 v%d, v%d, v%d" % (sb + 8 + t, sb + t, 8 + t))
            for t in range(8):
                a("v_xor_b32 v%d, v%d, v%d" % (sb + t, sb + t, sb + 8 + t))
        a("s_waitcnt vmcnt(%d)" % (nv - 2 * (n + 1) - (2 if b == 0 else 0)))
        for t in range(2):
            a(M % (v(O, 16), v(vreg[b] + 4 * t, 4), v(sb + 4 * t, 4), "0" if first else v(O, 16)))
            first = False
        if b == 0:
            for t in range(2):
                a(M % (v(O, 16), v(vreg[8] + 4 * t, 4), v(sb + 8 + 4 * t, 4), v(O, 16)))
    a("v_bfe_u32 v7, v0, 4, 1")
    a("v_mul_u32_u24 v7, 18432, v7")
    a("v_and_b32 v2, 15, v0")
    a("v_lshl_add_u32 v7, v2, 4, v7")
    a("v_lshl_add_u32 v2, v%d, 8, v7" % vHf)
    a("s_mul_i32 s26, s%d, 36864" % sQb)
    a("s_add_u32 s26, s26, %d" % WS_O)
    a("s_lshl_b32 s27, s%d, 9" % sH)
    a("s_add_u32 s27, s27, s26")
    a("s_lshr_b32 s28, s%d, 2" % sH)
    a("s_lshl_b32 s28, s28, 8")
    a("s_add_u32 s26, s26, s28")
    a("s_and_b32 s28, s%d, 3" % sH)
    a("s_lshl_b32 s28, s28, 2")
    a("s_add_u32 s26, s26, s28")
    a("s_add_u32 s26, s26, 16384")
    a("v_rcp_f32 v109, v%d" % (O + 10))
    for i in range(10):
        a("v_mul_f32 v%d, v%d, v109" % (O + i, O + i))
    for t in range(5):
        a("v_cvt_pk_bf16_f32 v%d, v%d, v%d" % (O + t, O + 2 * t, O + 2 * t + 1))
    a("buffer_store_dwordx4 %s, v2, %s, s27 offen" % (v(O, 4), R_))
    a("s_mov_b32 exec_hi, 0")
    a("buffer_store_dword v%d, v7, %s, s26 offen" % (O + 4, R_))
    a.label("end")
    a("s_endpgm")
    a.fix_hazards()
    return kernel_header(name) + a.text(), kernel_desc(name, 256), "grid=(256,1,1) block=(512,1,1) lds=0"


def gen_k3(name="k3_kernel", R=3):
    a = Asm("k3_")
    NS, SB = 18, 36864
    OT = SB * R
    XT = OT + 18432
    PS = XT + 18432
    LDS = PS + 512
    S_X, S_WO, S_WS = 8, 12, 16
    sW, sTmp, sSlot, sCnt = 20, 23, 26, 27
    a("s_cmp_ge_u32 s2, 128")
    a("s_cbranch_scc1 %s" % a.L("end"))
    a("s_load_dwordx2 s[32:33], s[0:1], %d" % KA_X)
    a("s_load_dwordx2 s[34:35], s[0:1], %d" % KA_WO)
    a("s_load_dwordx2 s[36:37], s[0:1], %d" % KA_WS)
    a("v_lshrrev_b32 v1, 6, v0")
    a("v_and_b32 v0, 63, v0")
    a("v_readfirstlane_b32 s%d, v1" % sW)
    a("v_lshlrev_b32 v30, 4, v0")
    a("s_waitcnt lgkmcnt(0)")
    srd(a, S_X, 32, 2048 * 1152)
    srd(a, S_WO, 34, 576 * 1152)
    srd(a, S_WS, 36, WS_END)
    a("s_cmp_ge_u32 s%d, 4" % sW)
    a("s_cbranch_scc1 %s" % a.L("loader"))

    vg, vr, vc = 2, 3, 4
    lane_decomp(a, 0, vg, vr, vc)
    CA, CUR = 8, 20
    ACC, SET = 64, (100, 140)
    a("v_and_b32 v5, 1, v%d" % vg)
    a("v_lshl_add_u32 v6, v5, 2, v%d" % vr)
    a("v_lshrrev_b32 v7, 1, v6")
    a("v_lshrrev_b32 v5, 1, v%d" % vg)
    a("v_mul_u32_u24 v5, 9216, v5")
    a("v_lshl_add_u32 v5, v6, 7, v5")
    a("v_lshl_add_u32 v5, v%d, 3, v5" % vc)
    a("s_mul_i32 s21, s%d, 9" % sW)
    for t in range(9):
        a("s_add_u32 s22, s21, %d" % t)
        a("s_and_b32 s24, s22, 3")
        a("s_lshr_b32 s22, s22, 2")
        a("s_lshl_b32 s22, s22, 10")
        a("v_xor_b32 v6, s24, v7")
        a("v_lshl_add_u32 v6, v6, 5, v5")
        a("v_add_u32 v%d, s22, v6" % (CA + t))
    a("v_add_u32 v31, %d, v30" % (OT - 1024))
    for i in range(36):
        a("v_mov_b32 v%d, 0" % (ACC + i))

    def set_addr():
        for t in range(9):
            a("v_add_u32 v%d, s%d, v%d" % (CUR + t, sSlot, CA + t))
        a("v_add_u32 v31, 1024, v31")

    def reads(step, se):
        base = SET[se]
        o = ["ds_read_b128 %s, v31" % v(base, 4)]
        for t in range(9):
            for hh in range(2):
                o.append("ds_read_b64_tr_b16 %s, v%d offset:%d" % (v(base + 4 + 4 * t + 2 * hh, 2), CUR + t, hh * 18432))
        return o

    def mfmas(se):
        base = SET[se]
        return ["v_mfma_f32_16x16x32_bf16 %s, %s, %s, %s" % (v(ACC + 4 * t, 4), v(base + 4 + 4 * t, 4), v(base, 4), v(ACC + 4 * t, 4)) for t in range(9)]

    compute_loop(a, NS, R, SB, 1, reads, mfmas, set_addr, sSlot, sCnt)
    XR = 100
    a("v_and_b32 v5, 15, v0")
    a("v_mul_u32_u24 v6, 1152, v5")
    a("v_lshl_add_u32 v6, v%d, 3, v6" % vg)
    a("s_mul_i32 s22, s%d, 288" % sW)
    a("s_add_u32 s22, s22, %d" % XT)
    a("v_add_u32 v6, s22, v6")
    for t in range(9):
        a("ds_read_b64 %s, v6 offset:%d" % (v(XR + 2 * t, 2), 32 * t))
    a("v_mov_b32 v8, 0")
    a("v_mov_b32 v9, 0")
    a("s_waitcnt lgkmcnt(0)")
    for t in range(9):
        ac = ACC + 4 * t
        x = XR + 2 * t
        a("v_lshlrev_b32 v10, 16, v%d" % x)
        a("v_and_b32 v11, 0xffff0000, v%d" % x)
        a("v_lshlrev_b32 v12, 16, v%d" % (x + 1))
        a("v_and_b32 v13, 0xffff0000, v%d" % (x + 1))
        for r in range(4):
            a("v_add_f32 v%d, v%d, v%d" % (ac + r, ac + r, 10 + r))
        a("v_cvt_pk_bf16_f32 v%d, v%d, v%d" % (x, ac, ac + 1))
        a("v_cvt_pk_bf16_f32 v%d, v%d, v%d" % (x + 1, ac + 2, ac + 3))
        a("ds_write_b64 v6, %s offset:%d" % (v(x, 2), 32 * t))
        a("v_lshlrev_b32 v%d, 16, v%d" % (ac, x))
        a("v_and_b32 v%d, 0xffff0000, v%d" % (ac + 1, x))
        a("v_lshlrev_b32 v%d, 16, v%d" % (ac + 2, x + 1))
        a("v_and_b32 v%d, 0xffff0000, v%d" % (ac + 3, x + 1))
        for r in range(4):
            a("v_add_f32 v8, v8, v%d" % (ac + r))
            a("v_fmac_f32 v9, v%d, v%d" % (ac + r, ac + r))
    for sw in ("v_permlane16_swap_b32", "v_permlane32_swap_b32"):
        a("v_mov_b32 v10, v8")
        a("v_mov_b32 v11, v9")
        a("%s v8, v10" % sw)
        a("%s v9, v11" % sw)
        a("v_add_f32 v8, v8, v10")
        a("v_add_f32 v9, v9, v11")
    a("s_lshl_b32 s22, s%d, 7" % sW)
    a("s_add_u32 s22, s22, %d" % PS)
    a("v_lshlrev_b32 v7, 3, v5")
    a("v_add_u32 v10, s22, v7")
    a("ds_write_b64 v10, v[8:9]")
    a("s_waitcnt lgkmcnt(0)")
    a("s_barrier")
    a("v_add_u32 v10, %d, v7" % PS)
    for w in range(4):
        a("ds_read_b64 %s, v10 offset:%d" % (v(12 + 2 * w, 2), 128 * w))
    a("v_mul_u32_u24 v7, 192, v5")
    a("v_lshl_add_u32 v7, v%d, 3, v7" % vg)
    a("v_add_u32 v7, %d, v7" % OT)
    a("s_waitcnt lgkmcnt(0)")
    a("v_add_f32 v12, v12, v14")
    a("v_add_f32 v13, v13, v15")
    a("v_add_f32 v16, v16, v18")
    a("v_add_f32 v17, v17, v19")
    a("v_add_f32 v12, v12, v16")
    a("v_add_f32 v13, v13, v17")
    a("v_mul_f32 v12, 0x%x, v12" % f2u(1.0 / 576))
    a("v_mul_f32 v13, 0x%x, v13" % f2u(1.0 / 576))
    a("v_fma_f32 v13, -v12, v12, v13")
    a("v_max_f32 v13, 0, v13")
    a("v_add_f32 v14, 0x%x, v13" % f2u(EPS))
    a("v_rsq_f32 v14, v14")
    a("v_mul_f32 v13, v13, v14")
    a("v_mul_f32 v13, v13, v14")
    a("v_add_f32 v13, 0x%x, v13" % f2u(EPS))
    a("v_rsq_f32 v13, v13")
    a("v_mul_f32 v14, v14, v13")
    a("v_mul_f32 v12, -v12, v14") if False else None
    a("v_mul_f32 v12, v12, v14")
    for t in range(9):
        ac = ACC + 4 * t
        for r in range(4):
            a("v_fma_f32 v%d, v%d, v14, -v12" % (ac + r, ac + r))
        a("v_cvt_pk_bf16_f32 v%d, v%d, v%d" % (ac, ac, ac + 1))
        a("v_cvt_pk_bf16_f32 v%d, v%d, v%d" % (ac + 1, ac + 2, ac + 3))
        a("s_add_u32 s22, s21, %d" % t)
        a("s_mul_i32 s24, s22, 43")
        a("s_lshr_b32 s24, s24, 8")
        a("s_mul_i32 s24, s24, 2880")
        a("s_lshl_b32 s22, s22, 5")
        a("s_add_u32 s22, s22, s24")
        a("v_add_u32 v15, s22, v7")
        a("ds_write_b64 v15, %s" % v(ac, 2))
    a("s_waitcnt lgkmcnt(0)")
    a("s_barrier")
    a("s_mul_i32 s28, s2, 18432")
    a("s_add_u32 s28, s28, %d" % WS_H)
    a("s_mul_i32 s29, s2, 3072")
    a("s_add_u32 s29, s29, %d" % WS_HN)
    a("s_lshl_b32 s22, s%d, 10" % sW)
    a("v_add_u32 v15, s22, v30")
    a("v_add_u32 v16, %d, v15" % XT)
    a("v_add_u32 v15, %d, v15" % OT)
    for k in range(5):
        if k == 4:
            a("s_cmp_ge_u32 s%d, 2" % sW)
            a("s_cbranch_scc1 %s" % a.L("end"))
        a("ds_read_b128 %s, v16 offset:%d" % (v(100 + 8 * k, 4), 4096 * k))
        a("ds_read_b128 %s, v15 offset:%d" % (v(104 + 8 * k, 4), 4096 * k))
        a("s_add_u32 s22, s%d, %d" % (sW, 4 * k))
        a("s_lshl_b32 s24, s22, 10")
        a("s_add_u32 s25, s28, s24")
        a("s_mul_i32 s22, s22, 86")
        a("s_lshr_b32 s22, s22, 8")
        a("s_mul_i32 s22, s22, %d" % (393216 - 3072))
        a("s_add_u32 s24, s24, s22")
        a("s_add_u32 s24, s24, s29")
        a("s_waitcnt lgkmcnt(1)")
        a("buffer_store_dwordx4 %s, v30, s[%d:%d], s25 offen" % (v(100 + 8 * k, 4), S_WS, S_WS + 3))
        a("s_waitcnt lgkmcnt(0)")
        a("buffer_store_dwordx4 %s, v30, s[%d:%d], s24 offen" % (v(104 + 8 * k, 4), S_WS, S_WS + 3))
    a("s_endpgm")

    a.label("loader")
    a("s_sub_u32 s%d, s%d, 4" % (sW, sW))
    a("s_mul_i32 s28, s2, 18432")
    a("s_add_u32 s29, s28, %d" % WS_O)
    a("s_lshl_b32 s22, s%d, 10" % sW)
    a("s_add_u32 s28, s28, s22")
    a("s_add_u32 s29, s29, s22")
    for k in range(5):
        if k == 4:
            a("s_cmp_ge_u32 s%d, 2" % sW)
            a("s_cbranch_scc1 %s" % a.L("ld_skip"))
        a("s_add_u32 m0, s22, %d" % (OT + 4096 * k))
        a("s_add_u32 s24, s29, %d" % (4096 * k))
        a("buffer_load_dwordx4 v30, s[%d:%d], s24 offen lds" % (S_WS, S_WS + 3))
        a("s_add_u32 m0, s22, %d" % (XT + 4096 * k))
        a("s_add_u32 s24, s28, %d" % (4096 * k))
        a("buffer_load_dwordx4 v30, s[%d:%d], s24 offen lds" % (S_X, S_X + 3))
    a.label("ld_skip")
    a("v_lshrrev_b32 v2, 3, v0")
    a("s_lshl_b32 s22, s%d, 3" % sW)
    a("v_add_u32 v3, s22, v2")
    a("v_lshrrev_b32 v4, 4, v3")
    a("v_bfe_u32 v5, v3, 2, 2")
    a("v_and_b32 v6, 3, v3")
    a("v_bfe_u32 v7, v2, 1, 2")
    a("v_lshlrev_b32 v7, 1, v7")
    a("v_and_b32 v8, 7, v0")
    a("v_xor_b32 v7, v7, v8")
    a("v_lshlrev_b32 v7, 4, v7")
    a("v_lshrrev_b32 v8, 1, v5")
    a("v_mul_u32_u24 v8, 18, v8")
    a("v_lshl_add_u32 v8, v4, 3, v8")
    a("v_and_b32 v9, 1, v5")
    a("v_lshl_add_u32 v8, v9, 2, v8")
    a("v_add_u32 v8, v8, v6")
    a("v_mul_u32_u24 v8, 1152, v8")
    a("v_add_u32 v10, v8, v7")
    a("v_lshlrev_b32 v8, 2, v5")
    a("v_lshl_add_u32 v8, v4, 1, v8")
    a("v_lshrrev_b32 v9, 1, v6")
    a("v_add_u32 v8, v8, v9")
    a("v_mul_u32_u24 v8, 18, v8")
    a("v_and_b32 v9, 1, v6")
    a("v_add3_u32 v8, v8, v9, 16")
    a("v_mul_u32_u24 v8, 1152, v8")
    a("v_add_u32 v11, v8, v7")
    a("s_mul_i32 s22, s%d, 9216" % sW)

    def issue(st):
        if st < 16:
            a("s_mov_b32 s24, %d" % (st * 36 * 1152))
        else:
            a("s_mov_b32 s24, %d" % ((st - 16) * 288 * 1152))
        for cbk in range(9):
            a("s_add_u32 m0, s22, %d" % ((st % R) * SB + cbk * (1024 - 128)))
            a("buffer_load_dwordx4 v%d, s[%d:%d], s24 offen offset:%d lds" % (10 if st < 16 else 11, S_WO, S_WO + 3, cbk * 128))

    loader_unrolled(a, NS, R, 9, issue)
    a.label("end")
    a("s_endpgm")
    a.fix_hazards()
    return kernel_header(name) + a.text(), kernel_desc(name, 184), "grid=(128,1,1) block=(512,1,1) lds=%d" % LDS
```

```python
from common import *

GELU_C1 = -2.0 * 1.4426950408889634 * 0.7978845608028654
GELU_C2 = GELU_C1 * 0.044715
import struct
def f2u(x):
    return struct.unpack("<I", struct.pack("<f", x))[0]


def lane_decomp(a, vl, vg, vr, vc):
    a("v_lshrrev_b32 v%d, 4, v%d" % (vg, vl))
    a("v_bfe_u32 v%d, v%d, 2, 2" % (vr, vl))
    a("v_and_b32 v%d, 3, v%d" % (vc, vl))


def gen_k4(name="k4_kernel", R=5):
    a = Asm("k4_")
    NS, SB = 32, 28672
    S_W1, S_WS, S_B1 = 8, 12, 16
    sW, sFt, sDt, sT = 20, 21, 22, 23
    sOffW, sOffH, sSlot, sCnt, sTmp = 24, 25, 26, 27, 28
    a("s_cmp_ge_u32 s2, 216")
    a("s_cbranch_scc1 %s" % a.L("end"))
    a("s_load_dwordx4 s[32:35], s[0:1], %d" % KA_W1)
    a("s_load_dwordx2 s[36:37], s[0:1], %d" % KA_WS)
    a("v_lshrrev_b32 v1, 6, v0")
    a("v_and_b32 v0, 63, v0")
    a("v_readfirstlane_b32 s%d, v1" % sW)
    a("s_and_b32 s%d, s2, 7" % sT)
    a("s_mul_i32 s%d, s%d, 27" % (sT, sT))
    a("s_lshr_b32 s%d, s2, 3" % sTmp)
    a("s_add_u32 s%d, s%d, s%d" % (sT, sT, sTmp))
    a("s_mul_i32 s%d, s%d, 43691" % (sFt, sT))
    a("s_lshr_b32 s%d, s%d, 18" % (sFt, sFt))
    a("s_mul_i32 s%d, s%d, 6" % (sTmp, sFt))
    a("s_sub_u32 s%d, s%d, s%d" % (sDt, sT, sTmp))
    a("s_waitcnt lgkmcnt(0)")
    srd(a, S_W1, 32, 2048 * 4608 * 2)
    srd(a, S_B1, 34, 4608 * 2)
    srd(a, S_WS, 36, WS_END)
    a("s_cmp_ge_u32 s%d, 4" % sW)
    a("s_cbranch_scc1 %s" % a.L("loader"))

    vg, vr, vc = 2, 3, 4
    lane_decomp(a, 0, vg, vr, vc)
    sWf, sWd = 29, 30
    a("s_lshr_b32 s%d, s%d, 1" % (sWf, sW))
    a("s_and_b32 s%d, s%d, 1" % (sWd, sW))
    CA, CUR = 8, 16
    ACC, SET = 64, (112, 140)
    BIAS = 40
    a("v_lshlrev_b32 v5, 3, v%d" % vc)
    a("v_lshl_add_u32 v6, v%d, 2, v%d" % (vg, vr))
    a("v_and_b32 v7, 1, v%d" % vg)
    a("v_xor_b32 v24, s%d, v7" % sWf)
    a("v_lshlrev_b32 v24, 7, v24")
    a("v_lshl_add_u32 v24, v6, 8, v24")
    a("v_add_u32 v24, v24, v5")
    for t in range(4):
        a("v_xor_b32 v25, %d, v%d" % (t, vr))
        a("v_lshl_add_u32 v%d, v25, 5, v24" % (CA + t))
    a("v_mul_u32_u24 v24, 192, v6")
    a("v_add_u32 v24, v24, v5")
    a("v_add_u32 v24, 16384, v24")
    a("s_mul_i32 s%d, s%d, 3" % (sTmp, sWd))
    for t in range(3):
        a("s_add_u32 s31, s%d, %d" % (sTmp, t))
        a("v_xor_b32 v25, s31, v7")
        a("v_lshl_add_u32 v%d, v25, 5, v24" % (CA + 4 + t))
    a("s_lshl_b32 s31, s%d, 8" % sFt)
    a("s_lshl_b32 s%d, s%d, 7" % (sTmp, sWf))
    a("s_add_u32 s31, s31, s%d" % sTmp)
    a("v_lshlrev_b32 v24, 3, v%d" % vg)
    for t in range(4):
        a("buffer_load_dwordx2 %s, v24, s[%d:%d], s31 offen offset:%d" % (v(BIAS + 2 * t, 2), S_B1, S_B1 + 3, 32 * t))
    for i in range(48):
        a("v_mov_b32 v%d, 0" % (ACC + i))

    def set_addr():
        for t in range(7):
            a("v_add_u32 v%d, s%d, v%d" % (CUR + t, sSlot, CA + t))

    def reads(step, se):
        o = []
        base = SET[se]
        order = [(0, 0), (1, 0), (0, 1), (0, 2), (0, 3), (1, 1), (1, 2)]
        for kind, t in order:
            for hh in range(2):
                if kind == 0:
                    o.append("ds_read_b64_tr_b16 %s, v%d offset:%d" % (v(base + 4 * t + 2 * hh, 2), CUR + t, (32 * step + 16 * hh) * 256))
                else:
                    o.append("ds_read_b64_tr_b16 %s, v%d offset:%d" % (v(base + 16 + 4 * t + 2 * hh, 2), CUR + 4 + t, (32 * step + 16 * hh) * 192))
        return o

    def mfmas(se):
        base = SET[se]
        o = []
        for b in range(3):
            for t in range(4):
                d = v(ACC + (t * 3 + b) * 4, 4)
                o.append("v_mfma_f32_16x16x32_bf16 %s, %s, %s, %s" % (d, v(base + 4 * t, 4), v(base + 16 + 4 * b, 4), d))
        return o

    compute_loop(a, NS, R, SB, 2, reads, mfmas, set_addr, sSlot, sCnt)
    a("s_waitcnt vmcnt(0)")
    BF = 112
    for t in range(4):
        a("v_lshlrev_b32 v%d, 16, v%d" % (BF + 4 * t + 0, BIAS + 2 * t))
        a("v_and_b32 v%d, 0xffff0000, v%d" % (BF + 4 * t + 1, BIAS + 2 * t))
        a("v_lshlrev_b32 v%d, 16, v%d" % (BF + 4 * t + 2, BIAS + 2 * t + 1))
        a("v_and_b32 v%d, 0xffff0000, v%d" % (BF + 4 * t + 3, BIAS + 2 * t + 1))
    a("s_mov_b32 s40, 0x%x" % f2u(GELU_C1))
    a("s_mov_b32 s41, 0x%x" % f2u(GELU_C2))
    a("v_mov_b32 v26, s40")
    a("s_mul_i32 s31, s%d, 72" % sDt)
    a("s_lshl_b32 s%d, s%d, 1" % (sTmp, sFt))
    a("s_add_u32 s31, s31, s%d" % sTmp)
    a("s_add_u32 s31, s31, s%d" % sWf)
    a("s_mul_i32 s31, s31, 12288")
    a("s_mul_i32 s%d, s%d, 3072" % (sTmp, sWd))
    a("s_add_u32 s31, s31, s%d" % sTmp)
    a("s_add_u32 s31, s31, %d" % WS_U)
    a("s_add_u32 s42, s31, 6144")
    a("v_lshlrev_b32 v24, 4, v0")
    TMP = 128
    OUTP = 144
    for kk in range(2):
        for b in range(3):
            xs = []
            for t in (2 * kk, 2 * kk + 1):
                for r in range(4):
                    xs.append((ACC + (t * 3 + b) * 4 + r, BF + 4 * t + r))
            for i, (x, bb) in enumerate(xs):
                a("v_add_f32 v%d, v%d, v%d" % (x, x, bb))
            for i, (x, bb) in enumerate(xs):
                a("v_mul_f32 v%d, v%d, v%d" % (TMP + i, x, x))
            for i, (x, bb) in enumerate(xs):
                a("v_fma_f32 v%d, v%d, s41, v26" % (TMP + i, TMP + i))
            for i, (x, bb) in enumerate(xs):
                a("v_mul_f32 v%d, v%d, v%d" % (TMP + i, TMP + i, x))
            for i, (x, bb) in enumerate(xs):
                a("v_exp_f32 v%d, v%d" % (TMP + i, TMP + i))
            for i, (x, bb) in enumerate(xs):
                a("v_add_f32 v%d, 1.0, v%d" % (TMP + i, TMP + i))
            for i, (x, bb) in enumerate(xs):
                a("v_rcp_f32 v%d, v%d" % (TMP + i, TMP + i))
            for i, (x, bb) in enumerate(xs):
                a("v_mul_f32 v%d, v%d, v%d" % (x, x, TMP + i))
            op = OUTP + 4 * ((kk * 3 + b) & 1)
            for i in range(4):
                a("v_cvt_pk_bf16_f32 v%d, v%d, v%d" % (op + i, xs[2 * i][0], xs[2 * i + 1][0]))
            a("buffer_store_dwordx4 %s, v24, s[%d:%d], s%d offen offset:%d" % (v(op, 4), S_WS, S_WS + 3, 31 if kk == 0 else 42, b * 1024))
    a("s_endpgm")

    a.label("loader")
    a("s_sub_u32 s%d, s%d, 4" % (sW, sW))
    if "samew" in DBG: a("s_and_b32 s%d, s2, 7" % sFt)
    if "samea" in DBG: a("s_mov_b32 s%d, 0" % sDt)
    VW, VH = 8, 12
    a("v_lshrrev_b32 v2, 4, v0")
    a("v_and_b32 v3, 15, v0")
    for i in range(4):
        a("v_add_u32 v4, %d, v2" % (4 * (i & 1)))
        a("v_lshlrev_b32 v4, 1, v4")
        a("v_xor_b32 v4, v3, v4")
        a("v_lshlrev_b32 v4, 4, v4")
        a("v_mul_u32_u24 v5, 9216, v2")
        a("v_add_u32 v4, v4, v5")
        a("v_add_u32 v%d, %d, v4" % (VW + i, 4 * i * 9216 - i * 1024))
    for j in range(3):
        a("v_add_u32 v4, %d, v0" % (64 * j))
        a("v_mul_u32_u24 v5, 43691, v4")
        a("v_lshrrev_b32 v5, 19, v5")
        a("v_mul_u32_u24 v6, 12, v5")
        a("v_sub_u32 v6, v4, v6")
        a("v_bfe_u32 v7, v5, 2, 1")
        a("v_lshlrev_b32 v7, 1, v7")
        a("v_xor_b32 v6, v6, v7")
        a("v_lshlrev_b32 v6, 4, v6")
        a("v_mul_u32_u24 v5, 192, v5")
        a("v_add_u32 v6, v6, v5")
        a("v_add_u32 v%d, %d, v6" % (VH + j, 64 - 1024 * j) if 64 - 1024 * j >= 0 else
          "v_subrev_u32 v%d, %d, v6" % (VH + j, 1024 * j - 64))
    a("s_mul_i32 s%d, s%d, %d" % (sOffW, sW, 16 * 9216))
    a("s_lshl_b32 s%d, s%d, 8" % (sTmp, sFt))
    a("s_add_u32 s%d, s%d, s%d" % (sOffW, sOffW, sTmp))
    a("s_mul_i32 s%d, s%d, %d" % (sOffH, sDt, 2048 * 192))
    a("s_mul_i32 s%d, s%d, 3072" % (sTmp, sW))
    a("s_add_u32 s%d, s%d, s%d" % (sOffH, sOffH, sTmp))
    a("s_add_u32 s%d, s%d, %d" % (sOffH, sOffH, WS_HN - 64))
    a("s_lshl_b32 s29, s%d, 12" % sW)
    a("s_mul_i32 s30, s%d, 3072" % sW)
    a("s_add_u32 s30, s30, 16384")
    a("s_mov_b32 s%d, 0" % sSlot)

    def issue():
        a("s_add_u32 m0, s%d, s29" % sSlot)
        for i in range(4):
            a("buffer_load_dwordx4 v%d, s[%d:%d], s%d offen offset:%d lds" % (VW + i, S_W1, S_W1 + 3, sOffW, 1024 * i))
        a("s_add_u32 m0, s%d, s30" % sSlot)
        for j in range(3):
            a("buffer_load_dwordx4 v%d, s[%d:%d], s%d offen offset:%d lds" % (VH + j, S_WS, S_WS + 3, sOffH, 1024 * j))
        a("s_add_u32 s%d, s%d, %d" % (sOffW, sOffW, 64 * 9216))
        a("s_add_u32 s%d, s%d, %d" % (sOffH, sOffH, 64 * 192))
        slot_advance(a, sSlot, SB, R)

    loader_loop(a, NS, R, 7, issue, sCnt)
    a.label("end")
    a("s_endpgm")
    a.fix_hazards()
    return kernel_header(name) + a.text(), kernel_desc(name, 168), "grid=(216,1,1) block=(512,1,1) lds=%d" % (SB * R)


def gen_k5(name="k5_kernel", R=7):
    a = Asm("k5_")
    NS, SB = 72, 20480
    HOFF = SB * R
    S_W2, S_WS, S_B2, S_OUT = 8, 12, 16, 44
    sW, sSb, sDb, sT = 20, 21, 22, 23
    sOffW, sOffU, sSlot, sCnt, sTmp = 24, 25, 26, 27, 28
    a("s_cmp_ge_u32 s2, 192")
    a("s_cbranch_scc1 %s" % a.L("end"))
    a("s_load_dwordx4 s[32:35], s[0:1], %d" % KA_W2)
    a("s_load_dwordx2 s[36:37], s[0:1], %d" % KA_WS)
    a("s_load_dwordx2 s[38:39], s[0:1], %d" % KA_OUT)
    a("v_lshrrev_b32 v1, 6, v0")
    a("v_and_b32 v0, 63, v0")
    a("v_readfirstlane_b32 s%d, v1" % sW)
    a("s_lshr_b32 s%d, s2, 3" % sT)
    a("s_mul_i32 s%d, s%d, 43691" % (sTmp, sT))
    a("s_lshr_b32 s%d, s%d, 18" % (sTmp, sTmp))
    a("s_mul_i32 s%d, s%d, 6" % (sDb, sTmp))
    a("s_sub_u32 s%d, s%d, s%d" % (sDb, sT, sDb))
    a("s_and_b32 s%d, s2, 7" % sSb)
    a("s_lshl_b32 s%d, s%d, 2" % (sSb, sSb))
    a("s_add_u32 s%d, s%d, s%d" % (sSb, sSb, sTmp))
    if "map83" in DBG:
        a("s_mul_i32 s%d, s%d, 43691" % (sTmp, sT))
        a("s_lshr_b32 s%d, s%d, 17" % (sTmp, sTmp))
        a("s_mul_i32 s%d, s%d, 3" % (sDb, sTmp))
        a("s_sub_u32 s%d, s%d, s%d" % (sDb, sT, sDb))
        a("s_and_b32 s%d, s2, 1" % sSb)
        a("s_mul_i32 s%d, s%d, 3" % (sSb, sSb))
        a("s_add_u32 s%d, s%d, s%d" % (sDb, sDb, sSb))
        a("s_bfe_u32 s%d, s2, 0x20001" % sSb)
        a("s_lshl_b32 s%d, s%d, 2" % (sTmp, sTmp))
        a("s_add_u32 s%d, s%d, s%d" % (sSb, sSb, sTmp))
    if "map64s" in DBG:
        a("s_and_b32 s%d, s2, 7" % sSb)
        a("s_lshl_b32 s%d, s%d, 3" % (sTmp, sTmp))
        a("s_add_u32 s%d, s%d, s%d" % (sSb, sSb, sTmp))
    a("s_waitcnt lgkmcnt(0)")
    srd(a, S_W2, 32, 4608 * 2048 * 2)
    srd(a, S_B2, 34, 2048 * 2)
    srd(a, S_WS, 36, WS_END)
    srd(a, S_OUT, 38, 2048 * 1152)
    VT = 32
    for j in range(3):
        a("v_add_u32 v4, %d, v0" % (64 * j))
        a("v_mul_u32_u24 v5, 43691, v4")
        a("v_lshrrev_b32 v5, 19, v5")
        a("v_mul_u32_u24 v6, 12, v5")
        a("v_sub_u32 v6, v4, v6")
        a("v_lshlrev_b32 v6, 4, v6")
        a("v_mul_u32_u24 v5, 1152, v5")
        a("v_add_u32 v%d, v6, v5" % (VT + j))
    a("s_and_b32 s29, s%d, 3" % sW)
    a("s_mul_i32 s43, s%d, %d" % (sSb, 64 * 1152))
    a("s_mul_i32 s%d, s%d, 192" % (sTmp, sDb))
    a("s_add_u32 s43, s43, s%d" % sTmp)
    a("s_mul_i32 s%d, s29, %d" % (sTmp, 16 * 1152))
    a("s_add_u32 s43, s43, s%d" % sTmp)
    a("s_cmp_ge_u32 s%d, 4" % sW)
    a("s_cbranch_scc1 %s" % a.L("loader"))

    vg, vr, vc = 2, 3, 4
    lane_decomp(a, 0, vg, vr, vc)
    sWd, sWs = 29, 30
    a("s_lshr_b32 s%d, s%d, 1" % (sWd, sW))
    a("s_and_b32 s%d, s%d, 1" % (sWs, sW))
    CA, CUR = 8, 16
    ACC, SET = 64, (96, 116)
    a("s_mul_i32 s31, s%d, 3072" % sWd)
    a("v_lshlrev_b32 v%d, 4, v0" % CA)
    a("v_add_u32 v%d, s31, v%d" % (CA, CA))
    a("v_lshl_add_u32 v6, v%d, 2, v%d" % (vg, vr))
    a("v_bfe_u32 v7, v6, 1, 2")
    a("v_lshlrev_b32 v5, 3, v%d" % vc)
    a("v_lshl_add_u32 v24, v6, 7, v5")
    a("v_add_u32 v24, 12288, v24")
    for b in range(2):
        a("s_lshl_b32 s31, s%d, 1" % sWs)
        a("s_add_u32 s31, s31, %d" % b)
        a("v_xor_b32 v25, s31, v7")
        a("v_lshl_add_u32 v%d, v25, 5, v24" % (CA + 1 + b))
    a("s_lshl_b32 s31, s%d, 7" % sSb)
    a("s_lshl_b32 s%d, s%d, 6" % (sTmp, sWs))
    a("s_add_u32 s31, s31, s%d" % sTmp)
    a("v_and_b32 v26, 15, v0")
    a("v_lshlrev_b32 v24, 1, v26")
    for b in range(2):
        a("buffer_load_ushort v%d, v24, s[%d:%d], s31 offen offset:%d" % (40 + b, S_B2, S_B2 + 3, 32 * b))
    for i in range(24):
        a("v_mov_b32 v%d, 0" % (ACC + i))

    def set_addr():
        for t in range(3):
            a("v_add_u32 v%d, s%d, v%d" % (CUR + t, sSlot, CA + t))

    def reads(step, se):
        base = SET[se]
        o = []
        o.append("ds_read_b128 %s, v%d offset:%d" % (v(base, 4), CUR, step * 6144))
        for hh in range(2):
            o.append("ds_read_b64_tr_b16 %s, v%d offset:%d" % (v(base + 12 + 2 * hh, 2), CUR + 1, (32 * step + 16 * hh) * 128))
        for t in (1, 2):
            o.append("ds_read_b128 %s, v%d offset:%d" % (v(base + 4 * t, 4), CUR, step * 6144 + t * 1024))
        for hh in range(2):
            o.append("ds_read_b64_tr_b16 %s, v%d offset:%d" % (v(base + 16 + 2 * hh, 2), CUR + 2, (32 * step + 16 * hh) * 128))
        return o

    def mfmas(se):
        base = SET[se]
        o = []
        for b in range(2):
            for t in range(3):
                d = v(ACC + (t * 2 + b) * 4, 4)
                o.append("v_mfma_f32_16x16x32_bf16 %s, %s, %s, %s" % (d, v(base + 4 * t, 4), v(base + 12 + 4 * b, 4), d))
        return o

    compute_loop(a, NS, R, SB, 2, reads, mfmas, set_addr, sSlot, sCnt)
    a("s_mul_i32 s31, s%d, %d" % (sWs, 32 * 192))
    a("s_mul_i32 s%d, s%d, 96" % (sTmp, sWd))
    a("s_add_u32 s31, s31, s%d" % sTmp)
    a("s_add_u32 s31, s31, %d" % HOFF)
    a("v_mul_u32_u24 v24, 192, v26")
    a("v_lshl_add_u32 v24, v%d, 3, v24" % vg)
    a("v_add_u32 v24, s31, v24")
    HR = 96
    for b in range(2):
        for t in range(3):
            a("ds_read_b64 %s, v24 offset:%d" % (v(HR + (t * 2 + b) * 2, 2), b * 16 * 192 + t * 32))
    a("s_waitcnt vmcnt(0)")
    a("v_lshlrev_b32 v40, 16, v40")
    a("v_lshlrev_b32 v41, 16, v41")
    a("s_waitcnt lgkmcnt(0)")
    for b in range(2):
        for t in range(3):
            ac = ACC + (t * 2 + b) * 4
            h = HR + (t * 2 + b) * 2
            for r in range(4):
                a("v_add_f32 v%d, v%d, v%d" % (ac + r, ac + r, 40 + b))
            a("v_lshlrev_b32 v44, 16, v%d" % h)
            a("v_and_b32 v45, 0xffff0000, v%d" % h)
            a("v_lshlrev_b32 v46, 16, v%d" % (h + 1))
            a("v_and_b32 v47, 0xffff0000, v%d" % (h + 1))
            for r in range(4):
                a("v_add_f32 v%d, v%d, v%d" % (ac + r, ac + r, 44 + r))
            a("v_cvt_pk_bf16_f32 v%d, v%d, v%d" % (h, ac, ac + 1))
            a("v_cvt_pk_bf16_f32 v%d, v%d, v%d" % (h + 1, ac + 2, ac + 3))
            a("ds_write_b64 v24, %s offset:%d" % (v(h, 2), b * 16 * 192 + t * 32))
    a("s_waitcnt lgkmcnt(0)")
    a("s_barrier")
    a("s_mul_i32 s31, s%d, 3072" % sW)
    a("s_add_u32 s31, s31, %d" % HOFF)
    a("v_lshlrev_b32 v24, 4, v0")
    a("v_add_u32 v24, s31, v24")
    for j in range(3):
        a("ds_read_b128 %s, v24 offset:%d" % (v(112 + 4 * j, 4), 1024 * j))
    for j in range(3):
        a("s_waitcnt lgkmcnt(%d)" % (2 - j))
        a("buffer_store_dwordx4 %s, v%d, s[%d:%d], s43 offen" % (v(112 + 4 * j, 4), VT + j, S_OUT, S_OUT + 3))
    a("s_endpgm")

    a.label("loader")
    a("s_sub_u32 s%d, s%d, 4" % (sW, sW))
    if "samew" in DBG: a("s_and_b32 s%d, s2, 7" % sSb)
    if "samea" in DBG: a("s_mov_b32 s%d, 0" % sDb)
    VW, VU = 8, 12
    a("v_lshrrev_b32 v2, 3, v0")
    a("v_and_b32 v3, 7, v0")
    a("v_bfe_u32 v4, v2, 1, 2")
    a("v_lshlrev_b32 v4, 1, v4")
    a("v_xor_b32 v4, v3, v4")
    a("v_lshlrev_b32 v4, 4, v4")
    a("v_lshl_add_u32 v%d, v2, 12, v4" % VW)
    a("v_add_u32 v%d, %d, v%d" % (VW + 1, 8 * 4096 - 1024, VW))
    a("v_lshlrev_b32 v%d, 4, v0" % VU)
    a("s_mul_i32 s%d, s%d, %d" % (sOffW, sW, 16 * 4096))
    a("s_lshl_b32 s%d, s%d, 7" % (sTmp, sSb))
    a("s_add_u32 s%d, s%d, s%d" % (sOffW, sOffW, sTmp))
    a("s_mul_i32 s%d, s%d, %d" % (sOffU, sDb, 72 * 12288))
    a("s_mul_i32 s29, s%d, 3072" % sW)
    a("s_add_u32 s%d, s%d, s29" % (sOffU, sOffU))
    a("s_add_u32 s%d, s%d, %d" % (sOffU, sOffU, WS_U))
    a("s_lshl_b32 s30, s%d, 11" % sW)
    a("s_add_u32 s30, s30, 12288")
    a("s_mov_b32 s%d, 0" % sSlot)
    a("s_add_u32 s31, s43, %d" % WS_H)
    for j in range(3):
        a("s_add_u32 m0, s29, %d" % (HOFF + 1024 * j))
        a("buffer_load_dwordx4 v%d, s[%d:%d], s31 offen lds" % (VT + j, S_WS, S_WS + 3))

    def issue():
        a("s_add_u32 m0, s%d, s29" % sSlot)
        for j in range(3):
            a("buffer_load_dwordx4 v%d, s[%d:%d], s%d offen offset:%d lds" % (VU, S_WS, S_WS + 3, sOffU, 1024 * j))
        a("s_add_u32 m0, s%d, s30" % sSlot)
        for i in range(2):
            a("buffer_load_dwordx4 v%d, s[%d:%d], s%d offen offset:%d lds" % (VW + i, S_W2, S_W2 + 3, sOffW, 1024 * i))
        a("s_add_u32 s%d, s%d, %d" % (sOffW, sOffW, 64 * 4096))
        a("s_add_u32 s%d, s%d, %d" % (sOffU, sOffU, 12288))
        slot_advance(a, sSlot, SB, R)

    loader_loop(a, NS, R, 5, issue, sCnt)
    a.label("end")
    a("s_endpgm")
    a.fix_hazards()
    return kernel_header(name) + a.text(), kernel_desc(name, 136), "grid=(192,1,1) block=(512,1,1) lds=%d" % (HOFF + 12288)
```

```python
from common import *

def gen_kp(name="kp_kernel", mode="full"):
    a = Asm("kp_")
    a("s_cmp_ge_u32 s2, 256")
    a("s_cbranch_scc1 %s" % a.L("end"))
    a("s_load_dwordx2 s[32:33], s[0:1], %d" % KA_W1)
    a("s_load_dwordx2 s[34:35], s[0:1], %d" % KA_W2)
    a("s_load_dwordx2 s[36:37], s[0:1], %d" % KA_WS)
    a("v_lshlrev_b32 v1, 4, v0")
    a("s_mul_i32 s20, s2, 73728")
    a("s_waitcnt lgkmcnt(0)")
    srd(a, 8, 32, 2048 * 4608 * 2)
    srd(a, 12, 34, 2048 * 4608 * 2)
    srd(a, 16, 36, WS_END)
    if mode == "full":
        for m in (8, 12):
            for i in range(18):
                a("s_add_u32 s21, s20, %d" % (i * 4096))
                a("buffer_load_dwordx4 %s, v1, s[%d:%d], s21 offen" % (v(4 + 4 * (i % 8), 4), m, m + 3))
    else:
        a("v_mov_b32 v1, 0")
        for m in (8, 12):
            a("buffer_load_dword v4, v1, s[%d:%d], s20 offen" % (m, m + 3))
        a("s_mul_i32 s21, s2, %d" % (WS_END // 256 // 64 * 64))
        a("buffer_load_dword v4, v1, s[16:19], s21 offen")
    a("s_waitcnt vmcnt(0)")
    a.label("end")
    a("s_endpgm")
    a.fix_hazards()
    return kernel_header(name) + a.text(), kernel_desc(name, 40), "grid=(256,1,1) block=(256,1,1) lds=0"
```

```python
import sys, os
from common import *
import k45, k123, kp

HEADER = open("sequential_preLN__sliding_block__mixer_token_mlp__prompt.s.ref").read().split("; Override launch")[0]

def assemble(kernels):
    o = HEADER
    for name, (code, desc, launch) in kernels:
        o += "; @launch kernel=%s %s\n" % (name, launch)
    o += '.amdgcn_target "amdgcn-amd-amdhsa--gfx950"\n'
    seen = set()
    for name, (code, desc, launch) in kernels:
        if name in seen: continue
        seen.add(name)
        o += code
    seen = set()
    for name, (code, desc, launch) in kernels:
        if name in seen: continue
        seen.add(name)
        o += desc
    return o

GEN = {"1": lambda: k123.gen_k1(), "2": lambda: k123.gen_k2(), "3": lambda: k123.gen_k3(),
       "4": lambda: k45.gen_k4(R=int(os.environ.get("R4", "5"))), "5": lambda: k45.gen_k5(R=int(os.environ.get("R5", "7"))),
       "p": lambda: kp.gen_kp()}

if __name__ == "__main__":
    which = sys.argv[2] if len(sys.argv) > 2 else "12345"
    ks = [("k%s_kernel" % c, GEN[c]()) for c in which]
    open(sys.argv[1], "w").write(assemble(ks))
```
